```python
import torch

def _softmax(x, axis=-1):
    return torch.softmax(x, dim=axis)
def _gelu(x):
    return torch.nn.functional.gelu(x, approximate="tanh")
def _silu(x):
    return torch.nn.functional.silu(x)
def _sigmoid(x):
    return torch.sigmoid(x)
def _layernorm(x, axis=-1, eps=1e-5):
    m = x.mean(dim=axis, keepdim=True)
    v = x.var(dim=axis, keepdim=True, unbiased=False)
    return (x - m) / torch.sqrt(v + eps)
def _scatter_add(tgt, idx, src, axis=0):
    return tgt.clone().index_add_(axis, idx, src)
def _segment_sum(src, seg, n):
    out = torch.zeros((n,) + src.shape[1:], dtype=src.dtype)
    return out.index_add_(0, seg, src)
def _pad(x, pw):
    flat = tuple(v for pair in reversed(pw) for v in pair)
    return torch.nn.functional.pad(x, flat)

kernel_name = 'gated_mix__ssm_conv_s4__dense_activation_gelu__prompt'

def setup_inputs():

    _w = (lambda a: (lambda t: t.to(torch.bfloat16) if t.is_floating_point() else t)(torch.as_tensor(a)))
    def _A_setup():
        B, L, D, N = 1, 2048, 640, 128
        A_re = -(lambda _x: torch.exp(torch.as_tensor(_x)))((lambda *s: torch.randn(*s, dtype=torch.bfloat16) * 3.2)(D, N))
        A_im = torch.pi * (lambda *s: torch.randn(*s, dtype=torch.bfloat16) * 0.05)(D, N)
        B_re = (lambda *s: torch.randn(*s, dtype=torch.bfloat16) * 0.1)(D, N)
        B_im = (lambda *s: torch.randn(*s, dtype=torch.bfloat16) * 0.1)(D, N)
        C_re = (lambda *s: torch.randn(*s, dtype=torch.bfloat16) * 0.1)(D, N)
        C_im = (lambda *s: torch.randn(*s, dtype=torch.bfloat16) * 0.1)(D, N)
        log_dt = (lambda *s: torch.randn(*s, dtype=torch.bfloat16) * 0.05)(D) * 0.5 - 4.0
        Dskip = (lambda *s: torch.randn(*s, dtype=torch.bfloat16) * 0.05)(D)
        return {
            "u": _w((lambda *s: torch.randn(*s, dtype=torch.bfloat16) * 0.05)(B, L, D)),
            "A_re": _w(A_re),
            "A_im": _w(A_im),
            "B_re": _w(B_re),
            "B_im": _w(B_im),
            "C_re": _w(C_re),
            "C_im": _w(C_im),
            "log_dt": _w(log_dt),
            "Dskip": _w(Dskip),
        }
    _A_in = _A_setup()

    def _B_setup():
        B, S, D, F = 1, 2048, 640, 1728
        return {
            "x": _w((lambda *s: torch.randn(*s, dtype=torch.bfloat16) * 0.05)(B, S, D)),
            "w1": _w((lambda *s: torch.randn(*s, dtype=torch.bfloat16) * 3.2)(D, F) * (D ** -0.5)),
            "b1": _w((lambda *s: torch.randn(*s, dtype=torch.bfloat16) * 3.2)(F) * 0.01),
            "w2": _w((lambda *s: torch.randn(*s, dtype=torch.bfloat16) * 0.1)(F, D) * (F ** -0.5)),
            "b2": _w((lambda *s: torch.randn(*s, dtype=torch.bfloat16) * 0.2)(D) * 0.01),
        }
    _B_in = _B_setup()

    return {
        "A_u": _A_in["u"],
        "A_A_re": _A_in["A_re"],
        "A_A_im": _A_in["A_im"],
        "A_B_re": _A_in["B_re"],
        "A_B_im": _A_in["B_im"],
        "A_C_re": _A_in["C_re"],
        "A_C_im": _A_in["C_im"],
        "A_log_dt": _A_in["log_dt"],
        "A_Dskip": _A_in["Dskip"],
        "B_x": _B_in["x"],
        "B_w1": _B_in["w1"],
        "B_b1": _B_in["b1"],
        "B_w2": _B_in["w2"],
        "B_b2": _B_in["b2"],
        "gate_w": _w((lambda *s: torch.randn(*s, dtype=torch.bfloat16) * 0.05)(640) * 16.0),
    }

def reference(A_u, A_A_re, A_A_im, A_B_re, A_B_im, A_C_re, A_C_im, A_log_dt, A_Dskip, B_x, B_w1, B_b1, B_w2, B_b2, gate_w):
    def _A_ref(u, A_re, A_im, B_re, B_im, C_re, C_im, log_dt, Dskip):
        Bsz, L, D = u.shape
        dt = torch.exp(log_dt)[:, None]
        A = A_re + 1j * A_im
        Bc = B_re + 1j * B_im
        Cc = C_re + 1j * C_im
        logdA = dt * A
        dB = dt * Bc
        l = (lambda x, dt: x.to(dt))(torch.arange(L), A_re.dtype)
        P = torch.exp(logdA[:, :, None] * l[None, None, :])
        K = torch.einsum("dn,dnl,dn->dl", Cc, P, dB).real
        L2 = 2 * L
        Kp = _pad(K, ((0, 0), (0, L)))
        up = (lambda x, *d: x.permute(*d))(u, 0, 2, 1)
        up = _pad(up, ((0, 0), (0, 0), (0, L)))
        Kf = (lambda x, axes=(-2,-1): torch.fft.rfft2(x.float(), dim=axes))(Kp[:, None, :], axes=(-2, -1))
        Uf = (lambda x, axes=(-2,-1): torch.fft.rfft2(x.float(), dim=axes))(up[:, :, None, :], axes=(-2, -1))
        Yf = Uf * Kf[None, :, :, :]
        y = (lambda x, s, axes=(-2,-1): torch.fft.irfft2(x, s=s, dim=axes).to(torch.bfloat16))(Yf, (1, L2), axes=(-2, -1))[:, :, 0, :L]
        y = (lambda x, *d: x.permute(*d))(y, 0, 2, 1) + u * Dskip[None, None, :]
        return y

    def _B_ref(x, w1, b1, w2, b2):
        h = torch.einsum("bsd,df->bsf", x, w1) + b1
        h = _gelu(h)
        return torch.einsum("bsf,fd->bsd", h, w2) + b2

    x = A_u
    g = _sigmoid((x * gate_w).sum(-1, keepdims=True))
    a = _A_ref(x, A_A_re, A_A_im, A_B_re, A_B_im, A_C_re, A_C_im, A_log_dt, A_Dskip)
    b = _B_ref(x, B_w1, B_b1, B_w2, B_b2)
    return g * a + (1 - g) * b
```

```python
NAME = "gated_mix__ssm_conv_s4__dense_activation_gelu__prompt"
HEAD = open("cdna_kernels/%s.s.ref" % NAME).read().split("; Override launch")[0]
class Asm:
    def __init__(self):
        self.l = []; self.launch = []; self.desc = []; self.uid = 0
    def __call__(self, s):
        for x in s.strip("\n").split("\n"):
            x = x.strip()
            if x: self.l.append(x if x.endswith(":") else "  " + x)
    def label(self, p="L"):
        self.uid += 1; return "%s_%d" % (p, self.uid)
    def begin(self, name, grid, block, lds, vgpr=256, agpr=0, sgpr=102, launch=True):
        if launch: self.launch.append("; @launch kernel=%s grid=(%d,1,1) block=(%d,1,1) lds=%d" % (name, grid, block, lds))
        self.l += [".globl %s" % name, ".p2align 8", ".type %s,@function" % name, "%s:" % name]
        acc = (vgpr + 3) // 4 * 4
        self.desc.append("""
.p2align 6
.amdhsa_kernel %s
  .amdhsa_next_free_vgpr %d
  .amdhsa_next_free_sgpr %d
  .amdhsa_accum_offset %d
  .amdhsa_group_segment_fixed_size 0
  .amdhsa_kernarg_size 144
  .amdhsa_user_sgpr_count 2
  .amdhsa_user_sgpr_kernarg_segment_ptr 1
  .amdhsa_system_sgpr_workgroup_id_x 1
.end_amdhsa_kernel""" % (name, acc + agpr if agpr else vgpr, sgpr, acc))
    def text(self):
        return (HEAD + "\n".join(self.launch) + '\n.amdgcn_target "amdgcn-amd-amdhsa--gfx950"\n.text\n' + "\n".join(self.l)
                + '\n.section .rodata,"a"' + "".join(self.desc) + "\n")
    def srd(self, r, lo, nbytes):
        self("s_mov_b32 s%d, s%d\ns_mov_b32 s%d, s%d\ns_mov_b32 s%d, 0x%x\ns_mov_b32 s%d, 0x00020000" % (r, lo, r+1, lo+1, r+2, nbytes, r+3))
```

```python
import sys; sys.path.insert(0, "tools")
from asmlib import *
import struct, math
def f2u(x): return struct.unpack("<I", struct.pack("<f", x))[0]
WS_H   = 0x0000000
WS_W2  = 0x0800000
WS_UT  = 0x0B00000
WS_R   = 0x0E00000
RP     = 4224
WS_AT  = 0x1200000
WS_G   = 0x1500000
WS_CNT = 0x1510000
WS_TS  = 0x1600000
WS_SZ  = 0x10000000
P = dict(x=36, Are=38, Aim=40, Bre=42, Bim=44, Cre=46, Cim=48, ldt=50, Dsk=52, Bx=54, w1=56, b1=58, w2=60, b2=62, gw=64, out=66, dbg=68, ws=70)
def vr(a, n=1): return "v%d" % a if n == 1 else "v[%d:%d]" % (a, a + n - 1)
def ar(a, n=1): return "a%d" % a if n == 1 else "a[%d:%d]" % (a, a + n - 1)
def sr(a, n=1): return "s%d" % a if n == 1 else "s[%d:%d]" % (a, a + n - 1)

def prologue(A, end):
    A("""
    s_cmp_ge_u32 s2, 256
    s_cbranch_scc1 %s
    s_load_dwordx16 s[36:51], s[0:1], 0
    s_load_dwordx16 s[52:67], s[0:1], 64
    s_load_dwordx4 s[68:71], s[0:1], 128
    v_lshrrev_b32 v1, 6, v0
    v_and_b32 v0, 63, v0
    v_readfirstlane_b32 s3, v1
    """ % end)

TS = [False]
OPT = set()
def stamp(A, idx, kern):
    if not TS[0]: return
    A("""
    s_memtime s[90:91]
    s_lshl_b32 s92, s2, 3
    s_add_u32 s92, s92, s3
    s_lshl_b32 s92, s92, 7
    s_add_u32 s92, s92, 0x%x
    s_waitcnt lgkmcnt(0)
    v_mov_b32 v254, s90
    v_mov_b32 v255, 0
    buffer_store_dword v254, v255, s[96:99], s92 offen offset:%d
    """ % (WS_TS + kern * 0x40000, idx * 4))


LKG = 0; KGSZ = 59 * 272
XCH = 12032
LW = 65536; LX = LW + 49152
NBAR1 = 10
NBW = [4, 2]

def k1_gemm(A):
    ACC, F = 64, [128, 144]
    AX, AW = 2, 6
    RX, RW = 10, 14
    A("s_setprio %d" % (2 if "gprio" in OPT else 0))
    A("""
    s_lshl_b32 s27, s20, 2
    s_add_u32 s27, s27, s3
    s_mul_i32 s27, s27, %d
    v_lshrrev_b32 v20, 3, v0
    v_mul_u32_u24 v20, 1280, v20
    v_add_u32 v20, s27, v20
    v_lshrrev_b32 v21, 4, v0
    v_and_b32 v22, 7, v0
    v_xor_b32 v22, v22, v21
    v_lshlrev_b32 v22, 4, v22
    v_xor_b32 v23, 64, v22
    v_add_u32 v%d, v20, v22
    v_add_u32 v%d, v20, v23
    v_add_u32 v%d, 10240, v%d
    v_add_u32 v%d, 20480, v%d
    v_add_u32 v%d, 20480, v%d
    """ % (32 * 1280, AX, AX + 1, AX + 1, AX + 1, AX + 2, AX, AX + 3, AX + 1))
    A("""
    s_mul_i32 s27, s3, %d
    s_lshl_b32 s24, s21, 8
    s_add_u32 s27, s27, s24
    v_mul_u32_u24 v20, 3456, v21
    v_add_u32 v20, s27, v20
    v_and_b32 v22, 15, v0
    v_lshlrev_b32 v23, 2, v21
    v_xor_b32 v22, v22, v23
    v_lshl_add_u32 v%d, v22, 4, v20
    v_add_u32 v%d, 13824, v%d
    v_add_u32 v%d, 27648, v%d
    v_add_u32 v%d, 41472, v%d
    """ % (16 * 3456, AW, AW + 1, AW, AW + 2, AW, AW + 3, AW))
    A("s_lshl_b32 s28, s3, 12\ns_add_u32 s29, s28, %d\ns_add_u32 s28, s28, %d\ns_waitcnt lgkmcnt(0)" % (LX, LW))
    A.srd(4, P["x"], 2048 * 1280); A.srd(8, P["w1"], 640 * 3456)
    def dma(s):
        out = []; sl = s % 3
        for i in range(4):
            out.append("s_add_u32 m0, s28, %d\ns_mov_b32 s30, %d\nbuffer_load_dwordx4 v%d, s[8:11], s30 offen lds" % (sl * 16384 + i * 1024, s * 64 * 3456, AW + i))
            out.append("s_add_u32 m0, s29, %d\ns_movk_i32 s31, %d\nbuffer_load_dwordx4 v%d, s[4:7], s31 offen lds" % (sl * 16384 + i * 1024, s * 128, AX + i))
        return out
    for x in dma(0): A(x)
    A.srd(12, P["ws"], WS_SZ); A.srd(16, P["b1"], 3456)
    if TS[0]: A.srd(96, P["ws"], WS_SZ)
    stamp(A, 0, 0)
    A("""
    s_lshr_b32 s22, s3, 1
    s_and_b32 s23, s3, 1
    s_lshl_b32 s27, s22, 7
    s_add_u32 s27, s27, s24
    v_lshrrev_b32 v25, 5, v0
    v_lshl_add_u32 v20, v25, 3, s27
    """)
    BI = 160
    for k in range(8): A("buffer_load_dwordx2 %s, v20, s[16:19], 0 offen offset:%d" % (vr(BI + 2 * k, 2), 16 * k))
    for x in dma(1): A(x)
    A("""
    s_lshl_b32 s27, s23, 13
    s_add_u32 s27, s27, %d
    v_and_b32 v22, 31, v0
    v_lshl_add_u32 v23, v22, 7, s27
    v_bfe_u32 v22, v0, 1, 3
    v_xor_b32 v22, v22, v25
    v_lshlrev_b32 v22, 4, v22
    """ % LX)
    for ks in range(4): A("v_xor_b32 v24, %d, v22\nv_add_u32 v%d, v23, v24" % (32 * ks, RX + ks))
    A("""
    v_bfe_u32 v22, v0, 2, 2
    v_lshl_add_u32 v23, v25, 3, v22
    v_lshlrev_b32 v23, 8, v23
    v_and_b32 v24, 3, v0
    v_lshl_add_u32 v23, v24, 3, v23
    v_and_b32 v24, 1, v21
    v_lshl_add_u32 v23, v24, 5, v23
    v_add_u32 v23, %d, v23
    s_lshl_b32 s27, s22, 1
    v_xor_b32 v24, s27, v22
    v_lshl_add_u32 v%d, v24, 6, v23
    v_xor_b32 v24, 1, v24
    v_lshl_add_u32 v%d, v24, 6, v23
    """ % (LW, RW, RW + 1))
    A("""
    s_lshl_b32 s27, s20, 1
    s_add_u32 s27, s27, s23
    s_mul_i32 s27, s27, 54
    s_lshl_b32 s32, s21, 2
    s_add_u32 s27, s27, s32
    s_lshl_b32 s32, s22, 1
    s_add_u32 s27, s27, s32
    s_lshl_b32 s32, s27, 12
    s_add_u32 s33, s32, 4096
    v_and_b32 v30, 15, v0
    v_lshlrev_b32 v30, 4, v30
    v_lshl_add_u32 v30, v25, 8, v30
    v_bfe_u32 v24, v0, 4, 1
    v_lshl_add_u32 v30, v24, 10, v30
    """)
    A("s_waitcnt vmcnt(8)")
    acc = lambda T, tt: ACC + (T * 2 + tt) * 16
    for T in range(2):
        for q in range(4):
            for tt in range(2):
                b = acc(T, tt) + 4 * q; s = BI + 2 * (4 * T + q)
                A("v_lshlrev_b32 v%d, 16, v%d\nv_and_b32 v%d, 0xffff0000, v%d\nv_lshlrev_b32 v%d, 16, v%d\nv_and_b32 v%d, 0xffff0000, v%d"
                  % (b, s, b + 1, s, b + 2, s + 1, b + 3, s + 1))
    def reads(s, ks, f):
        sl = s % 3; out = []
        for T in range(2):
            for h in range(2):
                out.append("ds_read_b64_tr_b16 %s, v%d offset:%d" % (vr(f + 4 * T + 2 * h, 2), RW + T, sl * 16384 + ks * 4096 + h * 1024))
            out.append("ds_read_b128 %s, v%d offset:%d" % (vr(f + 8 + 4 * T, 4), RX + ks, sl * 16384 + T * 4096))
        return out
    def mfmas(f):
        return ["v_mfma_f32_32x32x16_bf16 %s, %s, %s, %s" % (vr(acc(T, tt), 16), vr(f + 4 * T, 4), vr(f + 8 + 4 * tt, 4), vr(acc(T, tt), 16))
                for T, tt in ((0, 0), (1, 0), (0, 1), (1, 1))]
    def inter(m, rd, dm):
        if "nodma" in OPT: dm = []
        if "nomfma" in OPT: m = ["s_nop 0"] * 4
        if "noread" in OPT: rd = []
        A(m[0])
        for x in rd[:3]: A(x)
        A(m[1])
        for x in rd[3:]: A(x)
        if dm: A(dm[0])
        A(m[2])
        if dm: A(dm[1])
        A(m[3])
    A("s_barrier")
    stamp(A, 1, 0)
    for x in reads(0, 0, F[0]): A(x)
    pend = dma(2)
    A(pend[0]); A(pend[1]); pend = pend[2:]
    for s in range(10):
        for ks in range(3):
            A("s_waitcnt lgkmcnt(0)")
            inter(mfmas(F[ks % 2]), reads(s, ks + 1, F[(ks + 1) % 2]), pend[2 * ks: 2 * ks + 2])
        if s < 9:
            A("s_waitcnt vmcnt(%d) lgkmcnt(0)\ns_barrier" % (8 if s < 8 else 0))
            d = dma(s + 3) if s + 3 < 10 else []
            inter(mfmas(F[1]), reads(s + 1, 0, F[0]), d[:2]); pend = d[2:]
        else:
            A("s_waitcnt lgkmcnt(0)")
            for m in mfmas(F[1]): A(m)
    stamp(A, 2, 0)
    lend = A.label("gend")
    A("s_cmp_eq_u32 s21, 13\ns_cselect_b32 s27, s22, 0\ns_cmp_eq_u32 s27, 1\ns_cbranch_scc1 %s" % lend)
    c1 = 2 * math.sqrt(2 / math.pi) * math.log2(math.e); c2 = c1 * 0.044715
    A("s_mov_b32 s34, 0x%x\ns_mov_b32 s35, 0x%x\nv_mov_b32 v20, 0x%x\nv_mov_b32 v21, 0x%x\ns_nop 7" % (f2u(-c2), f2u(-c2), f2u(-c1), f2u(-c1)))
    def gelu(b, t, dst):
        o = []
        for p in (0, 2): o.append("v_pk_mul_f32 %s, %s, %s" % (vr(t + p, 2), vr(b + p, 2), vr(b + p, 2)))
        for p in (0, 2): o.append("v_pk_fma_f32 %s, %s, s[34:35], v[20:21]" % (vr(t + p, 2), vr(t + p, 2)))
        for p in (0, 2): o.append("v_pk_mul_f32 %s, %s, %s" % (vr(t + p, 2), vr(t + p, 2), vr(b + p, 2)))
        for p in range(4): o.append("v_exp_f32 v%d, v%d" % (t + p, t + p))
        for p in (0, 2): o.append("v_pk_add_f32 %s, %s, 1.0 op_sel_hi:[1,0]" % (vr(t + p, 2), vr(t + p, 2)))
        for p in range(4): o.append("v_rcp_f32 v%d, v%d" % (t + p, t + p))
        for p in (0, 2): o.append("v_pk_mul_f32 %s, %s, %s" % (vr(t + p, 2), vr(t + p, 2), vr(b + p, 2)))
        for p in (0, 2): o.append("v_cvt_pk_bf16_f32 v%d, v%d, v%d" % (dst + p // 2, t + p, t + p + 1))
        return o
    HP = 176
    A.l.append(".p2align 3")
    for n, (T, tt) in enumerate(((0, 0), (1, 0), (0, 1), (1, 1))):
        for ch in range(2):
            d = HP + n * 8 + ch * 4; b = acc(T, tt) + 8 * ch
            for x in merge(gelu(b, 128, d), gelu(b + 4, 136, d + 2)): A(x)
            A("buffer_store_dwordx4 %s, v30, s[12:15], s%d offen offset:%d" % (vr(d, 4), 32 + T, tt * 2048 + ch * 512))
    A("%s:" % lend)
    stamp(A, 3, 0)

def cmul(d, x, w):
    return ["v_pk_mul_f32 %s, %s, %s op_sel:[0,0] op_sel_hi:[1,0]" % (vr(d, 2), vr(x, 2), vr(w, 2)),
            "v_pk_fma_f32 %s, %s, %s, %s op_sel:[1,1,0] op_sel_hi:[0,1,1] neg_lo:[0,1,0]" % (vr(d, 2), vr(x, 2), vr(w, 2), vr(d, 2))]
NEG = {}
def cmul4(d, x, w):
    return ["v_mul_f32 v%d, v%d, v%d" % (d, x, w), "v_mul_f32 v%d, v%d, v%d" % (d + 1, x + 1, w),
            "v_fma_f32 v%d, -v%d, v%d, v%d" % (d, x + 1, w + 1, d) if w not in NEG else "v_fmac_f32 v%d, v%d, v%d" % (d, x + 1, NEG[w]),
            "v_fmac_f32 v%d, v%d, v%d" % (d + 1, x, w + 1)]
def merge(*ls):
    ls = [list(l) for l in ls]; o = []
    tot = [len(l) for l in ls]; n = max(tot); pos = [0] * len(ls)
    for i in range(1, n + 1):
        for k, l in enumerate(ls):
            while pos[k] < tot[k] * i // n: o.append(l[pos[k]]); pos[k] += 1
    return o

CUT0 = [1.0]
def cbar(A):
    l = A.label("nb")
    A("s_cmp_eq_u32 s35, 0\ns_cbranch_scc1 %s\ns_barrier\n%s:" % (l, l))
def k1_kgen(A, lpart):
    IN = 2
    ACC = 96
    A("""
    s_lshl_b32 s21, s20, 8
    v_lshl_add_u32 v1, v0, 2, s21
    s_lshl_b32 s22, s20, 1
    s_and_b32 s23, s22, 0xfffffffc
    s_waitcnt lgkmcnt(0)
    s_load_dword s24, s[50:51], s23
    """)
    for k, nm in enumerate(["Are", "Aim", "Bre", "Bim", "Cre", "Cim"]):
        A("global_load_dword v%d, v1, %s" % (IN + k, sr(P[nm], 2)))
    A.srd(12, P["ws"], WS_SZ)
    if TS[0]: A.srd(96, P["ws"], WS_SZ)
    L2E = math.log2(math.e); hi = struct.unpack("<f", struct.pack("<f", L2E))[0]
    A("""
    s_mul_i32 s25, s19, %d
    s_add_u32 s25, s25, %d
    s_mov_b32 m0, s25
    v_and_b32 v11, 31, v0
    v_mul_u32_u24 v11, 272, v11
    v_lshrrev_b32 v12, 5, v0
    v_lshl_add_u32 v11, v12, 4, v11
    v_add_u32 v11, s25, v11
    s_and_b32 s22, s22, 2
    s_lshl_b32 s22, s22, 3
    s_mov_b32 s26, 0x%x
    s_mov_b32 s27, 0x%x
    s_mov_b32 s28, 0x%x
    s_mov_b32 s29, 0x%x
    s_waitcnt lgkmcnt(0)
    s_lshr_b32 s24, s24, s22
    s_lshl_b32 s24, s24, 16
    v_mov_b32 v13, s24
    v_mul_f32 v14, s26, v13
    v_fma_f32 v15, v13, s26, -v14
    v_fma_f32 v15, v13, s27, v15
    v_exp_f32 v14, v14
    v_mul_f32 v15, s28, v15
    v_fma_f32 v14, v14, v15, v14
    v_cvt_pk_bf16_f32 v14, v14, v14
    v_lshlrev_b32 v13, 16, v14
    """ % (KGSZ, LKG, f2u(hi), f2u(L2E - hi), f2u(math.log(2)), f2u(1 / (2 * math.pi))))
    for r in range(16): A("v_mov_b32 v%d, 0" % (ACC + r))
    A("s_and_b32 s31, s3, s35\ns_lshl_b32 s30, s31, 4\ns_sub_u32 s30, 16, s30\ns_waitcnt vmcnt(0)")
    stamp(A, 0, 0)
    lp = A.label("kg")
    A.l.append(".p2align 3")
    A("%s:" % lp)
    U = 14
    for k in range(6): A("v_lshlrev_b32 v%d, s30, v%d" % (U + k, IN + k))
    for k in range(6): A("v_and_b32 v%d, 0xffff0000, v%d" % (U + k, U + k))
    E1, E8, E256, E2, E4, E16, C0 = 20, 22, 24, 26, 28, 30, 32
    A("""
    v_mul_f32 v14, v14, v13
    v_mul_f32 v15, v15, v13
    v_mul_f32 v16, v16, v13
    v_mul_f32 v17, v17, v13
    v_mul_f32 v14, s26, v14
    v_mul_f32 v15, s29, v15
    v_mul_f32 v34, 8.0, v14
    v_mul_f32 v35, 8.0, v15
    v_mul_f32 v36, 0x43800000, v14
    v_mul_f32 v37, 0x43800000, v15
    v_fract_f32 v15, v15
    v_fract_f32 v35, v35
    v_fract_f32 v37, v37
    v_exp_f32 v14, v14
    v_exp_f32 v34, v34
    v_exp_f32 v36, v36
    v_cos_f32 v20, v15
    v_sin_f32 v21, v15
    v_cos_f32 v22, v35
    v_sin_f32 v23, v35
    v_cos_f32 v24, v37
    v_sin_f32 v25, v37
    """.replace("8.0", "0x41000000"))
    for x in cmul(C0, 18, 16): A(x)
    A("""
    v_pk_mul_f32 v[20:21], v[20:21], v[14:15] op_sel_hi:[1,0]
    v_pk_mul_f32 v[22:23], v[22:23], v[34:35] op_sel_hi:[1,0]
    v_pk_mul_f32 v[24:25], v[24:25], v[36:37] op_sel_hi:[1,0]
    """)
    for x in merge(cmul(E2, E1, E1), cmul(E16, E8, E8)): A(x)
    for x in cmul(E4, E2, E2): A(x)
    def put(t, v, row, neg):
        return ["v_cvt_pk_bf16_f32 v%d, v%d, %sv%d" % (t, v, "-" if neg else "", v + 1), "ds_write_addtid_b32 v%d offset:%d" % (t, row * 272)]
    def chain(regs, t, start, steps, neg):
        o = []; cur = start
        for k, (w, row) in enumerate(steps):
            d = regs[k % 2]; o += cmul(d, cur, w); o += put(t + (k % 2), d, row, neg); cur = d
        return o
    CB = 27
    ev = ["v_mov_b32 v38, 0x3f80", "ds_write_addtid_b32 v38 offset:%d" % (CB * 272)] + put(39, E16, CB + 2, 0) + chain([40, 42], 44, E16, [(E16, CB + j) for j in range(4, 32, 2)], 0)
    od = put(46, E8, CB + 1, 0) + chain([48, 50], 52, E8, [(E16, CB + j) for j in range(3, 32, 2)], 0)
    r1 = put(54, C0, 0, 1) + chain([56, 58], 60, C0, [(E1, l) for l in range(1, 8)], 1)
    B = [62 + 2 * k for k in range(7)]
    rowB = [8, 17, 24, 12, 13, 14, 15]
    r2 = []
    for k in range(7):
        r2 += cmul(B[k], C0 if k == 0 else B[k - 1], E256) + put(76 + (k % 2), B[k], rowB[k], 1)
    r3 = chain([78, 80], 82, B[0], [(E2, 9), (E2, 10), (E2, 11), (E2, 16)], 1)
    r3 += chain([78, 80], 82, B[1], [(E4, 18), (E4, 19)], 1) + chain([78, 80], 82, B[2], [(E4, 25), (E4, 26)], 1)
    for k in range(4): r3 += chain([84 + 2 * (k % 2), 0], 88 + (k % 2), B[3 + k], [(E8, 20 + k)], 1)
    body = merge(ev, od, merge(r1, r2) + r3)
    if "nowr" in OPT: body = [x for x in body if not x.startswith("ds_write")]
    if "nocvt" in OPT: body = [x for x in body if not x.startswith("v_cvt")]
    if "nopk" in OPT: body = [x for x in body if not x.startswith("v_mul") and not x.startswith("v_fmac")]
    if "nobody" in OPT: body = ["s_nop 0"] * 100
    stamp(A, 3, 0)
    if "lowbody" in OPT: A("s_setprio 0")
    cut = int(len(body) * CUT0[0])
    A.l.append(".p2align 3")
    for n, x in enumerate(body):
        A(x)
        if n + 1 == cut: cbar(A)
    FA = 112
    stamp(A, 4, 0)
    A("s_waitcnt lgkmcnt(0)")
    for s in range(8):
        A("ds_read_b128 %s, v11 offset:%d\nds_read_b128 %s, v11 offset:%d" % (vr(FA + 8 * s, 4), 32 * s, vr(FA + 8 * s + 4, 4), CB * 272 + 32 * s))
    for s in range(8):
        if s == 4: cbar(A)
        A("s_waitcnt lgkmcnt(%d)" % (14 - 2 * s))
        A("v_mfma_f32_32x32x16_bf16 %s, %s, %s, %s" % (vr(ACC, 16), vr(FA + 8 * s, 4), vr(FA + 8 * s + 4, 4), vr(ACC, 16)))
    lr = A.label("red"); lx = A.label("exp"); lg = A.label("gw")
    A("s_cmp_lg_u32 s35, 0\ns_cbranch_scc1 %s\ns_cmp_eq_u32 s30, 0\ns_mov_b32 s30, 0\ns_cbranch_scc0 %s\ns_nop 7\ns_branch %s\n%s:" % (lg, lp, lx, lg))
    A("s_barrier\ns_cmp_eq_u32 s31, 0\ns_cbranch_scc1 %s\ns_nop 7" % lr)
    for r in range(15): A("ds_write_addtid_b32 v%d offset:%d" % (ACC + r, XCH + 256 * r))
    A("s_waitcnt lgkmcnt(0)\ns_barrier\ns_branch %s\n%s:" % (lpart, lr))
    A("s_add_u32 m0, s25, %d\ns_barrier" % KGSZ)
    for r in range(15): A("ds_read_addtid_b32 v%d offset:%d" % (FA + r, XCH + 256 * r))
    A("s_waitcnt lgkmcnt(0)")
    for r in range(15): A("v_add_f32 v%d, v%d, v%d" % (ACC + r, ACC + r, FA + r))
    A("s_barrier\n%s:" % lx)
    stamp(A, 1, 0)
    a = lambda q, r: ACC + 4 * q + r
    A("""
    s_mul_i32 s21, s20, %d
    s_add_u32 s21, s21, %d
    v_and_b32 v1, 31, v0
    v_lshlrev_b32 v1, 4, v1
    v_lshlrev_b32 v2, 3, v12
    v_add_u32 v2, v2, v1
    v_sub_u32 v2, 4088, v2
    v_sub_u32 v1, 2032, v1
    v_and_b32 v3, 1, v0
    v_cmp_eq_u32 vcc, 1, v3
    v_mov_b32 v4, 0
    v_lshlrev_b32 v3, 1, v0
    """ % (RP, WS_R))
    pk = lambda d, x, y: "v_cvt_pk_bf16_f32 v%d, v%d, v%d" % (d, x, y)
    A(pk(20, a(0, 3), a(0, 2))); A(pk(21, a(0, 1), a(0, 0)))
    A("s_add_u32 s22, s21, 4096\nbuffer_store_short v4, v3, s[12:15], s22 offen")
    A("buffer_store_dwordx2 v[20:21], v2, s[12:15], s21 offen")
    A("s_mov_b64 exec, 0xffffffff")
    A(pk(24, a(2, 0), a(1, 3))); A(pk(25, a(1, 2), a(1, 2))); A(pk(26, a(1, 2), a(1, 1))); A(pk(27, a(1, 0), a(1, 0)))
    for b, (f0, f4, f8) in ((28, (a(2, 1), a(2, 2), a(2, 3))), (32, (a(3, 0), a(3, 1), a(3, 2)))):
        A(pk(b, f8, f8)); A(pk(b + 1, f4, f4)); A(pk(b + 2, f4, f0)); A(pk(b + 3, f0, f0))
    for b, off in ((24, 1536), (28, 1024), (32, 512)):
        A("buffer_store_dwordx4 %s, v1, s[12:15], s21 offen offset:%d" % (vr(b, 4), off))
    A("s_mov_b32 exec_lo, 0\ns_mov_b32 exec_hi, -1\nv_subrev_u32 v1, 1536, v1")
    for r in range(4):
        b = 36 + 4 * r; f0, f8 = a(1, r), a(2, r)
        A("v_cndmask_b32 v%d, v%d, v%d, vcc" % (b + 1, f0, f8))
        A(pk(b, f8, f8)); A(pk(b + 1, f8, b + 1)); A(pk(b + 2, f0, f0)); A("v_mov_b32 v%d, v%d" % (b + 3, b + 2))
        A("buffer_store_dwordx4 %s, v1, s[12:15], s21 offen offset:%d" % (vr(b, 4), 1536 - 512 * r))
    A("s_mov_b64 exec, -1")
    stamp(A, 2, 0)


def w2load(A, R, S):
    A("""
    s_mul_i32 s21, s%d, 6554
    s_lshr_b32 s21, s21, 16
    s_mul_i32 s22, s21, 10
    s_sub_u32 s22, s%d, s22
    s_mul_i32 s23, s21, 40960
    s_lshl_b32 s24, s22, 7
    s_add_u32 s23, s23, s24
    s_add_u32 s24, s23, 10240
    """ % (S, S))
    for e in range(8):
        A("buffer_load_dwordx2 %s, v8, s[4:7], s%d offen offset:%d" % (vr(R + 2 * e, 2), 23 + e // 4, 1280 * (e % 4)))
    A("""
    s_mul_i32 s23, s22, 54
    s_add_u32 s23, s23, s21
    s_mul_i32 s23, s23, 5120
    s_sub_u32 s24, s22, 8
    s_mul_i32 s24, s24, %d
    s_mul_i32 s21, s21, 5120
    s_add_u32 s24, s24, s21
    s_add_u32 s24, s24, 4096
    s_movk_i32 s21, 1024
    s_cmp_ge_u32 s22, 8
    s_cselect_b32 s23, s24, s23
    s_cselect_b32 s%d, %d, s21
    s_add_u32 s23, s23, %d
    s_cmp_ge_u32 s%d, 540
    s_cselect_b32 s%d, %d, s23
    """ % (4 * 54 * 5120, S + 2, 54 * 5120, WS_W2, S, S + 1, WS_SZ))
def w2fin(A, R, S, O):
    for j in range(4):
        for p in range(4):
            A("v_perm_b32 v%d, v%d, v%d, s%d" % (O + 4 * j + p, R + 2 * (2 * p + 1) + j // 2, R + 2 * (2 * p) + j // 2, 28 + j % 2))
        A("buffer_store_dwordx4 %s, v9, s[12:15], s%d offen" % (vr(O + 4 * j, 4), S + 1))
        if j < 3: A("s_add_u32 s%d, s%d, s%d" % (S + 1, S + 1, S + 2))
def w2setup(A):
    A.srd(4, P["w2"], 1728 * 1280)
    A("""
    v_lshrrev_b32 v9, 5, v0
    v_mul_u32_u24 v8, 20480, v9
    v_bfe_u32 v9, v0, 4, 1
    v_mul_u32_u24 v9, 5120, v9
    v_add_u32 v8, v8, v9
    v_and_b32 v9, 15, v0
    v_lshl_add_u32 v8, v9, 3, v8
    v_lshlrev_b32 v9, 4, v0
    """)

def ut_load(A):
    X = 176
    A.srd(4, P["x"], 2048 * 1280)
    A("""
    s_lshr_b32 s16, s18, 3
    s_and_b32 s17, s18, 7
    s_mul_i32 s23, s16, %d
    s_lshl_b32 s24, s17, 7
    s_add_u32 s24, s24, s23
    s_lshl_b32 s22, s17, 5
    s_add_u32 s22, s22, s23
    s_add_u32 s22, s22, 1024
    v_lshrrev_b32 v1, 3, v0
    v_and_b32 v2, 7, v0
    v_mul_u32_u24 v3, 1280, v1
    v_lshl_add_u32 v3, v2, 4, v3
    v_lshrrev_b32 v4, 1, v0
    v_and_b32 v5, 1, v0
    v_mul_u32_u24 v6, 1280, v4
    v_lshl_add_u32 v6, v5, 4, v6
    """ % (64 * 1280))
    for i in range(8):
        A("buffer_load_dwordx4 %s, v3, s[4:7], s24 offen\ns_add_u32 s24, s24, 10240" % vr(X + 4 * i, 4))
    for i in range(2):
        A("buffer_load_dwordx4 %s, v6, s[4:7], s22 offen\ns_add_u32 s22, s22, 40960" % vr(X + 32 + 4 * i, 4))
def ut_fin(A):
    X = 176; PB = 160; UP = 144
    A("""
    v_mul_u32_u24 v50, %d, v1
    v_lshl_add_u32 v50, v2, 4, v50
    v_add_u32 v50, s25, v50
    v_mul_u32_u24 v51, %d, v4
    v_lshl_add_u32 v51, v5, 4, v51
    v_add_u32 v51, s25, v51
    v_lshrrev_b32 v52, 4, v0
    v_bfe_u32 v53, v0, 2, 2
    v_lshl_add_u32 v53, v52, 3, v53
    v_mul_u32_u24 v53, %d, v53
    v_and_b32 v54, 3, v0
    v_lshl_add_u32 v53, v54, 3, v53
    v_add_u32 v53, s25, v53
    v_and_b32 v54, 15, v0
    v_mul_u32_u24 v54, %d, v54
    v_lshl_add_u32 v54, v52, 4, v54
    v_add_u32 v54, s25, v54
    v_mul_u32_u24 v55, %d, v1
    v_lshl_add_u32 v55, v2, 4, v55
    v_add_u32 v55, s25, v55
    v_lshlrev_b32 v56, 12, v1
    v_lshl_add_u32 v56, v2, 4, v56
    s_waitcnt vmcnt(0)
    """ % (PB, PB, PB, UP, UP))
    for i in range(8): A("ds_write_b128 v50, %s offset:%d" % (vr(X + 4 * i, 4), 8 * PB * i))
    for i in range(2): A("ds_write_b128 v51, %s offset:%d" % (vr(X + 32 + 4 * i, 4), 32 * PB * i + 128))
    A("s_waitcnt lgkmcnt(0)")
    for tl in range(5):
        for th in range(2):
            for h in range(2):
                A("ds_read_b64_tr_b16 %s, v53 offset:%d" % (vr(X + 8 * tl + 4 * th + 2 * h, 2), (32 * th + 4 * h) * PB + 32 * tl))
    A("s_waitcnt lgkmcnt(0)")
    for tl in range(5):
        for th in range(2):
            A("ds_write_b128 v54, %s offset:%d" % (vr(X + 8 * tl + 4 * th, 4), 16 * tl * UP + 64 * th))
    A("""
    s_lshl_b32 s24, s17, 18
    s_lshl_b32 s22, s16, 7
    s_add_u32 s22, s22, %d
    s_add_u32 s24, s24, s22
    s_lshl_b32 s26, s17, 16
    s_add_u32 s22, s22, s26
    s_add_u32 s22, s22, %d
    s_waitcnt lgkmcnt(0)
    """ % (WS_UT, 512 * 4096))
    for p in range(10): A("ds_read_b128 %s, v55 offset:%d" % (vr(X + 4 * p, 4), 8 * p * UP))
    for p in range(10):
        A("s_waitcnt lgkmcnt(%d)" % (9 - p))
        s = 24 if p < 8 else 22
        A("buffer_store_dwordx4 %s, v56, s[12:15], s%d offen\ns_add_u32 s%d, s%d, 32768" % (vr(X + 4 * p, 4), s, s, s))
    A("""
    v_mov_b32 v62, 0
    s_lshl_b32 s24, s18, 8
    s_add_u32 s24, s24, %d
    v_lshlrev_b32 v61, 2, v0
    buffer_store_dword v62, v61, s[12:15], s24 offen
    """ % WS_CNT)
def gate(A):
    GX, GW = 64, 144
    A.srd(4, P["x"], 2048 * 1280); A.srd(8, P["gw"], 1280)
    A("""
    v_lshrrev_b32 v1, 3, v0
    v_and_b32 v2, 7, v0
    v_mul_u32_u24 v3, 1280, v1
    v_lshl_add_u32 v3, v2, 4, v3
    v_lshlrev_b32 v7, 4, v2
    s_mul_i32 s24, s33, 20480
    s_add_u32 s23, s24, 10240
    """)
    for i in range(10): A("buffer_load_dwordx4 %s, v7, s[8:11], 0 offen offset:%d" % (vr(GW + 4 * i, 4), 128 * i))
    for hh in range(2):
        for i in range(10): A("buffer_load_dwordx4 %s, v3, s[4:7], s%d offen offset:%d" % (vr(GX + 40 * hh + 4 * i, 4), 24 - hh, 128 * i))
    A("s_waitcnt vmcnt(10)")
    for k in range(8): A("v_mov_b32 v%d, 0" % (40 + k))
    for hh in range(2):
        for i in range(40): A("v_dot2c_f32_bf16 v%d, v%d, v%d" % (40 + 4 * hh + i % 4, GX + 40 * hh + i, GW + i))
        if hh == 0: A("s_waitcnt vmcnt(0)")
    A("s_nop 1")
    for b in (40, 44): A("v_add_f32 v%d, v%d, v%d\nv_add_f32 v%d, v%d, v%d\nv_add_f32 v%d, v%d, v%d" % (b, b, b + 1, b + 2, b + 2, b + 3, b, b, b + 2))
    for c in ("quad_perm:[1,0,3,2]", "quad_perm:[2,3,0,1]", "row_half_mirror"):
        A("s_nop 1")
        for b in (40, 44): A("v_add_f32_dpp v%d, v%d, v%d %s row_mask:0xf bank_mask:0xf" % (b, b, b, c))
    A("""
    v_mul_f32 v40, 0x%x, v40
    v_mul_f32 v44, 0x%x, v44
    v_exp_f32 v40, v40
    v_exp_f32 v44, v44
    s_lshl_b32 s24, s33, 6
    s_add_u32 s24, s24, %d
    v_add_f32 v40, 1.0, v40
    v_add_f32 v44, 1.0, v44
    v_rcp_f32 v40, v40
    v_rcp_f32 v44, v44
    v_lshlrev_b32 v61, 2, v1
    s_nop 0
    buffer_store_dword v40, v61, s[12:15], s24 offen
    buffer_store_dword v44, v61, s[12:15], s24 offen offset:32
    """ % (f2u(-math.log2(math.e)), f2u(-math.log2(math.e)), WS_G))

def k1(A, name="k1_kernel"):
    A.begin(name, 256, 512, 163840, vgpr=256)
    end = A.label("end"); lh = A.label("help"); lk = A.label("kgen"); lsp = A.label("spare"); lpart = A.label("part"); lnext = A.label("next")
    prologue(A, end)
    A("""
    s_and_b32 s22, s2, 7
    s_lshr_b32 s23, s2, 3
    s_cmp_ge_u32 s23, 28
    s_cbranch_scc1 %s
    s_cmp_ge_u32 s3, 4
    s_cbranch_scc1 %s
    s_mul_i32 s24, s23, 37
    s_lshr_b32 s24, s24, 8
    s_mul_i32 s25, s24, 7
    s_sub_u32 s21, s23, s25
    s_and_b32 s25, s22, 1
    s_mul_i32 s25, s25, 7
    s_add_u32 s21, s21, s25
    s_lshr_b32 s20, s22, 1
    s_lshl_b32 s20, s20, 2
    s_add_u32 s20, s20, s24
    """ % (lsp, lh))
    if "nogemm" in OPT:
        A("s_waitcnt lgkmcnt(0)"); A.srd(96, P["ws"], WS_SZ); stamp(A, 0, 0); A("s_endpgm")
    k1_gemm(A)
    A("s_endpgm\n%s:" % lh)
    if "nohelp" in OPT: A("s_endpgm")
    A("s_setprio %d" % (0 if "noprio" in OPT else 1))
    lm = A.label("misc"); lut = A.label("ut")
    A("""
    s_mul_i32 s18, s22, 28
    s_add_u32 s18, s18, s23
    s_sub_u32 s19, s3, 4
    s_lshl_b32 s72, s18, 1
    s_lshr_b32 s20, s19, 1
    s_add_u32 s20, s20, s72
    s_add_u32 s75, s72, 1
    s_movk_i32 s78, 540
    s_mov_b32 s35, 1
    s_branch %s
    %s:
    s_lshl_b32 s18, s22, 2
    s_add_u32 s18, s18, s23
    s_sub_u32 s18, s18, 28
    s_mul_i32 s72, s18, 3
    s_add_u32 s72, s72, 448
    s_add_u32 s75, s72, 1
    s_add_u32 s78, s72, 2
    s_mul_i32 s20, s18, 6
    s_add_u32 s20, s20, s3
    s_add_u32 s20, s20, 448
    s_mov_b32 s19, s3
    s_lshl_b32 s33, s18, 1
    s_add_u32 s33, s33, s3
    s_sub_u32 s33, s33, 6
    s_lshl_b32 s33, s33, 1
    s_add_u32 s18, s18, 224
    s_mov_b32 s35, 0
    s_cmp_lt_u32 s3, 6
    s_cbranch_scc1 %s
    s_mul_i32 s25, s3, %d
    s_waitcnt lgkmcnt(0)
    """ % (lk, lsp, lk, KGSZ))
    A.srd(12, P["ws"], WS_SZ)
    if TS[0]: A.srd(96, P["ws"], WS_SZ)
    stamp(A, 0, 0)
    lg = A.label("gate")
    A("%s:" % lg)
    gate(A)
    A("s_add_u32 s33, s33, 1\ns_bitcmp1_b32 s33, 0\ns_cbranch_scc1 %s" % lg)
    stamp(A, 5, 0)
    A("s_branch %s\n%s:" % (lm, lk))
    k1_kgen(A, lpart)
    A("s_endpgm\n%s:" % lpart)
    for n in range(NBW[0]): A("s_barrier")
    A("%s:" % lm)
    if "nomisc" in OPT: A("s_endpgm")
    A("s_cmp_eq_u32 s3, 7\ns_cbranch_scc1 %s" % lut)
    w2setup(A)
    l2 = A.label("w2a"); l3 = A.label("w2b")
    for n in range(3):
        if n == 2: A("s_cmp_ge_u32 s78, 540\ns_cbranch_scc1 %s" % l2)
        w2load(A, 176 + 16 * n, 72 + 3 * n)
    A("%s:" % l2)
    for n in range(NBW[1]): cbar(A)
    A("s_mov_b32 s28, 0x05040100\ns_mov_b32 s29, 0x07060302\ns_waitcnt vmcnt(0)")
    for n in range(3):
        if n == 2: A("s_cmp_ge_u32 s78, 540\ns_cbranch_scc1 %s" % l3)
        w2fin(A, 176 + 16 * n, 72 + 3 * n, 64 + 16 * n)
    A("%s:" % l3)
    stamp(A, 1, 0)
    A("s_endpgm\n%s:" % lut)
    ut_load(A)
    for n in range(NBW[1]): cbar(A)
    ut_fin(A)
    stamp(A, 1, 0)
    A("%s:\ns_endpgm" % end)
```

```python
import sys; sys.path.insert(0, "tools")
from gen1 import *
CP = 4160; UBO = 4 * CP; BSZ = 21248
LB0 = 0; LXC = 2 * BSZ
LRED = LXC + 32768
LE = LRED + 61440
LCNT = LE + 20480
LDS2 = LCNT + 64
NS = 3

def k2_map(A):
    A("""
    s_and_b32 s22, s2, 7
    s_lshr_b32 s23, s2, 3
    s_lshr_b32 s24, s22, 1
    s_lshl_b32 s24, s24, 3
    s_lshr_b32 s25, s23, 2
    s_add_u32 s20, s24, s25
    s_and_b32 s22, s22, 1
    s_lshl_b32 s22, s22, 2
    s_and_b32 s23, s23, 3
    s_add_u32 s21, s22, s23
    """)

def dcol(A, v4, tmp):
    A("""
    s_lshr_b32 s26, s21, 2
    s_lshl_b32 s26, s26, 6
    s_and_b32 s27, s21, 3
    s_add_u32 s26, s26, s27
    s_add_u32 s26, s26, 512
    v_lshl_add_u32 v%d, v%d, 2, s26
    """ % (v4, tmp))

def k2_gemm(A, K=1):
    ACC = 16; ST = [96 + 36 * i for i in range(NS)]; G = 8
    A("v_lshlrev_b32 v1, 4, v0\nv_add_u32 v6, 4096, v1")
    for i in range(4):
        A("s_add_u32 s26, s3, %d\ns_and_b32 s26, s26, 3\ns_lshl_b32 s26, s26, 10\nv_add_u32 v%d, s26, v1" % (i, 2 + i))
    A("""
    s_mul_i32 s26, s20, %d
    s_mul_i32 s27, s21, %d
    s_lshl_b32 s28, s3, 12
    s_mul_i32 s29, s3, 5120
    s_waitcnt lgkmcnt(0)
    s_add_u32 s4, s70, s26
    s_addc_u32 s5, s71, 0
    s_mov_b32 s6, %d
    s_mov_b32 s7, 0x00020000
    s_add_u32 s27, s27, 0x%x
    s_add_u32 s8, s70, s27
    s_addc_u32 s9, s71, 0
    s_mov_b32 s10, %d
    s_mov_b32 s11, 0x00020000
    """ % (54 * 4096, 54 * 5120, 54 * 4096, WS_W2, 54 * 5120))
    def loads(s):
        b = ST[s % NS]; o = []
        h = lambda i: "buffer_load_dwordx4 %s, v%d, s[4:7], s28 offen" % (vr(b + 4 * i, 4), 2 + i)
        w = lambda j: "buffer_load_dwordx4 %s, v%d, s[8:11], s29 offen offset:%d" % (vr(b + 16 + 4 * j, 4), 6 if j == 4 else 1, 0 if j == 4 else 1024 * j)
        o = [h(3), w(0), w(1), w(2), w(3), w(4), h(2), h(1), h(0) + "\ns_add_u32 s28, s28, 16384\ns_add_u32 s29, s29, 20480"]
        return o
    for s in range(NS - 1):
        for x in loads(s): A(x)
    A.srd(12, P["ws"], WS_SZ); A.srd(16, P["out"], 2048 * 1280)
    if TS[0]: A.srd(96, P["ws"], WS_SZ)
    stamp(A, 0, K)
    A("s_barrier")
    A("""
    s_lshl_b32 s26, s20, 2
    s_add_u32 s26, s26, s3
    s_lshl_b32 s27, s26, 6
    s_add_u32 s27, s27, 0x%x
    v_lshrrev_b32 v7, 4, v0
    v_lshlrev_b32 v12, 4, v7
    buffer_load_dwordx4 v[8:11], v12, s[12:15], s27 offen
    s_mul_i32 s30, s26, %d
    v_mul_u32_u24 v7, %d, v7
    v_and_b32 v12, 15, v0
    """ % (WS_G, 16 * 1280, 4 * 1280))
    dcol(A, 13, 12)
    A("""
    v_lshl_add_u32 v13, v13, 1, v7
    s_lshl_b32 s26, s21, 7
    v_lshl_add_u32 v12, v12, 3, v7
    v_add_u32 v12, s26, v12
    s_mul_i32 s26, s3, 15360
    s_add_u32 s26, s26, %d
    v_lshl_add_u32 v14, v0, 2, s26
    s_mul_i32 s26, s3, 5120
    s_add_u32 s26, s26, %d
    v_add_u32 v15, s26, v1
    """ % (LRED, LE))
    for i in range(1, 4):
        A("s_add_u32 s26, s3, %d\ns_and_b32 s26, s26, 3\ns_mul_i32 s26, s26, 15360\ns_add_u32 s%d, s26, %d" % (i, 31 + i, LRED + (i - 1) * 5120))
    def mf(s, i, j):
        b = ST[s % NS]; a = ACC + 20 * i + 4 * j
        return "v_mfma_f32_16x16x32_bf16 %s, %s, %s, %s" % (vr(a, 4), vr(b + 4 * i, 4), vr(b + 16 + 4 * j, 4), "0" if s == 0 else vr(a, 4))
    def wr(i):
        return ["s_mov_b32 m0, s%d\ns_nop 0" % (31 + i)] + ["ds_write_addtid_b32 v%d offset:%d" % (ACC + 20 * i + k, 256 * k) for k in range(20)]
    skip = A.label("g2skip"); fin = A.label("g2fin")
    extra = 1
    for s in range(14):
        nxt = s + NS - 1
        ld = loads(nxt) if nxt < 14 else []
        infl = 9 * min(NS - 2, 13 - s)
        if s == 13:
            A("s_cmp_ge_u32 s3, 2\ns_cbranch_scc1 %s" % skip)
        A("s_waitcnt vmcnt(%d)" % (infl + (extra if s < NS - 1 else 0) + (1 if TS[0] and s == 0 else 0)))
        if s in (1, 13): stamp(A, 1 if s == 1 else 2, K)
        m = [mf(s, i, j) for i in (3, 2, 1, 0) for j in range(5)]
        if s < 13:
            for k, x in enumerate(m):
                A(x)
                if k % 2 == 1 and ld and k // 2 < len(ld): A(ld[k // 2])
        else:
            for k in range(10): A(m[k])
            w3 = wr(3); w2 = wr(2)
            for k in range(10, 20):
                A(m[k]); A("\n".join(w3[2 * (k - 10) + (k > 10): 2 * (k - 10) + 3]))
            A("\n".join(w2)); A("\n".join(wr(1)))
            A("s_branch %s" % fin)
            A(skip + ":")
            A("s_waitcnt vmcnt(0)\ns_nop 7")
            for i in (3, 2, 1): A("\n".join(wr(i)))
            A(fin + ":")
    A("""
    v_sub_f32 v8, 1.0, v8
    v_sub_f32 v9, 1.0, v9
    v_sub_f32 v10, 1.0, v10
    v_sub_f32 v11, 1.0, v11
    s_waitcnt lgkmcnt(0)
    """)
    stamp(A, 3, K)
    A("s_barrier")
    stamp(A, 4, K)
    R0 = 96; E0 = 160
    rd = []
    for j in range(5):
        for sl in range(3):
            for h in range(2):
                k = 4 * j + 2 * h
                rd.append("ds_read2st64_b32 %s, v14 offset0:%d offset1:%d" % (vr(R0 + 20 * sl + k, 2), 20 * sl + k, 20 * sl + k + 1))
        rd.append("ds_read_b128 %s, v15 offset:%d" % (vr(E0 + 4 * j, 4), 1024 * j))
    for x in rd[:14]: A(x)
    for j in range(5):
        A("s_waitcnt lgkmcnt(%d)" % (7 if j < 4 else 0))
        if j < 3:
            for x in rd[14 + 7 * j: 21 + 7 * j]: A(x)
        for h in range(2):
            k = 4 * j + 2 * h; a = ACC + k
            A("v_pk_add_f32 %s, %s, %s" % (vr(a, 2), vr(a, 2), vr(R0 + k, 2)))
            A("v_pk_add_f32 %s, %s, %s" % (vr(R0 + 20 + k, 2), vr(R0 + 20 + k, 2), vr(R0 + 40 + k, 2)))
        for h in range(2):
            k = 4 * j + 2 * h; a = ACC + k
            A("v_pk_add_f32 %s, %s, %s" % (vr(a, 2), vr(a, 2), vr(R0 + 20 + k, 2)))
        for h in range(2):
            k = 4 * j + 2 * h; a = ACC + k
            A("v_pk_fma_f32 %s, %s, %s, %s" % (vr(a, 2), vr(a, 2), vr(G + 2 * h, 2), vr(E0 + k, 2)))
        if j == 3:
            for r in range(4):
                A("v_cvt_pk_bf16_f32 v%d, v%d, v%d\nv_cvt_pk_bf16_f32 v%d, v%d, v%d" % (40 + 2 * r, ACC + r, ACC + 4 + r, 41 + 2 * r, ACC + 8 + r, ACC + 12 + r))
                A("buffer_store_dwordx2 %s, v12, s[16:19], s30 offen offset:%d" % (vr(40 + 2 * r, 2), 1280 * r))
    for h in range(2):
        A("v_cvt_pk_bf16_f32 v%d, v%d, v%d" % (48 + h, ACC + 16 + 2 * h, ACC + 17 + 2 * h))
        A("buffer_store_short v%d, v13, s[16:19], s30 offen offset:%d" % (48 + h, 2560 * h))
        A("buffer_store_short_d16_hi v%d, v13, s[16:19], s30 offen offset:%d" % (48 + h, 2560 * h + 1280))
    stamp(A, 5, K)
    A("s_endpgm")

def csync(A, cnt, tgt, add=True):
    l = A.label("cs")
    if add: A("s_mov_b64 exec, 1\nds_add_u32 v2, v3 offset:%d\ns_mov_b64 exec, -1" % cnt)
    A("""%s:
    ds_read_b32 v4, v2 offset:%d
    s_waitcnt lgkmcnt(0)
    v_readfirstlane_b32 s26, v4
    s_cmp_lt_u32 s26, s%d
    s_cbranch_scc1 %s""" % (l, cnt, tgt, l))

def k2_conv(A, K=1, hand=True):
    L = 16; U = 22; W = 28; ACC = 48; BF = 80; AF = 144; UE = 208; GG = 212; B2 = 216
    VA, VB, VW, VL, VX, VU, VS, VT, VT4, VE = 5, 6, 7, 8, 9, 10, 11, 12, 13, 14
    A("s_setprio 2")
    A("""
    s_sub_u32 s33, s3, 4
    s_lshl_b32 s26, s33, 10
    v_lshl_add_u32 v%d, v0, 4, s26
    s_lshl_b32 s34, s21, 6
    s_add_u32 s34, s34, s20
    s_mul_i32 s28, s34, %d
    s_add_u32 s28, s28, 0x%x
    s_lshl_b32 s29, s34, 12
    s_add_u32 s29, s29, 0x%x
    s_waitcnt lgkmcnt(0)
    """ % (VL, RP, WS_R, WS_UT))
    A.srd(12, P["ws"], WS_SZ)
    def loads():
        A("""
        buffer_load_dwordx4 v[%d:%d], v%d, s[12:15], s28 offen
        buffer_load_dwordx2 v[%d:%d], v%d, s[12:15], s28 offen offset:16
        buffer_load_dwordx4 v[%d:%d], v%d, s[12:15], s29 offen
        """ % (L, L + 3, VL, L + 4, L + 5, VL, U, U + 3, VL))
    loads()
    if TS[0]: A.srd(96, P["ws"], WS_SZ)
    stamp(A, 0, K)
    A("""
    v_mov_b32 v2, %d
    v_mov_b32 v28, 0
    v_mov_b32 v29, 0
    v_min_u32 v15, 59, v0
    v_lshlrev_b32 v15, 3, v15
    s_mul_i32 s26, s33, %d
    v_and_b32 v1, 7, v0
    v_lshl_add_u32 v1, v1, 3, s26
    ds_write_b64 v15, v[28:29] offset:%d
    ds_write_b64 v15, v[28:29] offset:%d
    ds_write_b64 v1, v[28:29] offset:4096
    ds_write_b64 v1, v[28:29] offset:%d
    ds_write_b64 v2, v[28:29]
    """ % (LCNT, CP, UBO, UBO + BSZ, 4096 + BSZ))
    A("""
    s_add_u32 s35, s34, 32
    s_lshr_b32 s26, s21, 2
    s_lshl_b32 s26, s26, 6
    s_and_b32 s27, s21, 3
    s_add_u32 s26, s26, s27
    s_lshl_b32 s27, s20, 1
    s_and_b32 s27, s27, 0xfc
    s_add_u32 s76, s26, s27
    s_add_u32 s76, s76, 512
    s_and_b32 s77, s20, 1
    s_sub_u32 s77, 3, s77
    """)
    for k, s in enumerate((34, 35, 76)):
        A("s_lshl_b32 s26, s%d, 1\ns_and_b32 s26, s26, 0xfffc\ns_load_dword s%d, s[52:53], s26" % (s, 78 + k))
    A("s_waitcnt lgkmcnt(0)\ns_barrier")
    for k, s in enumerate((34, 35, 76)):
        A("s_and_b32 s26, s%d, 1\ns_xor_b32 s26, s26, 1\ns_lshl_b32 s26, s26, 4\ns_lshl_b32 s%d, s%d, s26\ns_and_b32 s%d, s%d, 0xffff0000" % (s, 78 + k, 78 + k, 78 + k, 78 + k))
    A("""
    v_mov_b32 v3, 1
    v_and_b32 v1, 15, v0
    v_lshrrev_b32 v15, 4, v0
    s_lshl_b32 s26, s33, 7
    s_sub_u32 s26, 384, s26
    v_lshlrev_b32 v{VB}, 5, v1
    v_lshl_add_u32 v{VB}, v15, 4, v{VB}
    v_add_u32 v{VB}, s26, v{VB}
    v_add_u32 v{VB}, {UBO}, v{VB}
    v_sub_u32 v4, 3, v1
    v_and_b32 v4, 3, v4
    v_mul_u32_u24 v{VA}, {CP}, v4
    v_lshrrev_b32 v4, 2, v1
    v_sub_u32 v4, 3, v4
    v_lshl_add_u32 v{VA}, v4, 3, v{VA}
    v_lshl_add_u32 v{VA}, v15, 4, v{VA}
    v_add_u32 v{VA}, s26, v{VA}
    v_mov_b32 v{VW}, v{VL}
    s_lshl_b32 s26, s33, 10
    v_lshl_add_u32 v{VS}, v0, 3, s26
    v_add_u32 v{VU}, {UP}, v{VS}
    v_and_b32 v4, 3, v0
    v_lshlrev_b32 v4, 4, v4
    v_lshrrev_b32 v{VX}, 2, v0
    v_add_u32 v4, v4, v{VX}
    s_lshl_b32 s26, s33, 11
    s_add_u32 s26, s26, {LXC}
    v_lshl_add_u32 v{VX}, v4, 2, s26
    s_lshl_b32 s81, s33, 13
    s_add_u32 s81, s81, {LXC}
    s_mov_b32 s82, {BSZ}
    s_mov_b32 s83, 4
    s_mov_b32 s84, 0
    s_mov_b32 s85, 0
    """.format(VA=VA, VB=VB, VW=VW, VL=VL, VX=VX, VU=VU, VS=VS, UBO=UBO, CP=CP, UP=UBO + 480, LXC=LXC, BSZ=BSZ))
    A("""
    s_lshl_b32 s26, s21, 18
    v_lshlrev_b32 v{VT}, 14, v1
    v_add_u32 v{VT}, s26, v{VT}
    v_lshl_add_u32 v{VT}, v15, 3, v{VT}
    """.format(VT=VT))
    dcol(A, 4, 1)
    A.srd(72, P["b2"], 1280)
    A("""
    v_lshlrev_b32 v{VT4}, 12, v4
    v_lshl_add_u32 v{VT4}, v15, 3, v{VT4}
    v_lshlrev_b32 v4, 1, v4
    buffer_load_ushort v{B24}, v4, s[72:75], 0 offen
    s_lshl_b32 s26, s21, 7
    v_lshlrev_b32 v4, 3, v1
    buffer_load_dwordx2 v[{B2}:{B21}], v4, s[72:75], s26 offen
    s_lshl_b32 s26, s20, 2
    s_add_u32 s26, s26, s33
    s_lshl_b32 s86, s26, 5
    s_add_u32 s86, s86, {AT}
    s_lshl_b32 s27, s26, 6
    s_add_u32 s27, s27, {G}
    v_lshlrev_b32 v4, 4, v15
    buffer_load_dwordx4 v[{GG}:{GG3}], v4, s[12:15], s27 offen
    s_mul_i32 s26, s33, 5120
    s_add_u32 s26, s26, {LE}
    v_lshl_add_u32 v{VE}, v0, 4, s26
    """.format(VT4=VT4, B24=B2 + 2, B2=B2, B21=B2 + 1, AT=WS_AT, G=WS_G, GG=GG, GG3=GG + 3, LE=LE, VE=VE))
    def build(first):
        A("s_waitcnt vmcnt(%d)" % (3 if first else 0))
        if first: stamp(A, 1, K)
        for i in range(4):
            A("v_mov_b32 v%d, v%d\nv_alignbit_b32 v%d, v%d, v%d, 16\nv_mov_b32 v%d, v%d\nv_alignbit_b32 v%d, v%d, v%d, 16\nv_mov_b32 v%d, v%d" % (
                W + i, L + i, W + 4 + i, L + i + 1, L + i, W + 8 + i, L + i + 1, W + 12 + i, L + i + 2, L + i + 1, W + 16 + i, U + i))
        src = 35 if first else 76
        A("s_mul_i32 s28, s%d, %d\ns_add_u32 s28, s28, 0x%x\ns_lshl_b32 s29, s%d, 12\ns_add_u32 s29, s29, 0x%x" % (src, RP, WS_R, src, WS_UT))
        loads()
        for c in range(4): A("ds_write_b128 v%d, %s offset:%d" % (VW, vr(W + 4 * c, 4), CP * c))
        A("ds_write_b128 v%d, %s offset:%d" % (VW, vr(W + 16, 4), UBO + 480))
        A(("v_add_u32 v%d, s82, v%d" if first else "v_subrev_u32 v%d, s82, v%d") % (VW, VW))
    build(True)
    A("s_waitcnt lgkmcnt(0)")
    csync(A, 0, 83)
    stamp(A, 2, K)
    loop = A.label("cv"); nob = A.label("nob")
    A(".p2align 3" if False else "")
    A(loop + ":")
    def rds(q):
        o = []
        for rho in range(2):
            a = AF + 8 * q + 4 * rho
            o.append("ds_read_b128 %s, v%d offset:%d" % (vr(BF + 8 * (7 - q) + 4 * rho, 4), VB, 64 * (1 - rho) + 512 * (7 - q)))
            o.append("ds_read_b64 %s, v%d offset:%d" % (vr(a, 2), VA, 3648 - 512 * q - 64 * rho))
            o.append("ds_read_b64 %s, v%d offset:%d" % (vr(a + 2, 2), VA, 3656 - 512 * q - 64 * rho))
        return o
    for q in (7, 6): A("\n".join(rds(q)))
    pend = 12
    for q in range(7, -1, -1):
        nx = rds(q - 2) if q >= 2 else []
        if q == 1: nx = ["ds_read_b64 %s, v%d" % (vr(UE, 2), VU), "ds_read_b64 %s, v%d offset:512" % (vr(UE + 2, 2), VU), "ds_read_b32 v4, v2 offset:4"]
        A("s_waitcnt lgkmcnt(%d)" % (6 if q > 0 else 3))
        m = []
        for rho in range(2):
            for n in range(7, q - 1, -1):
                a = ACC + 4 * n
                m.append("v_mfma_f32_16x16x32_bf16 %s, %s, %s, %s" % (vr(a, 4), vr(AF + 8 * q + 4 * rho, 4), vr(BF + 8 * (n - q) + 4 * rho, 4), "0" if (n == q and rho == 0) else vr(a, 4)))
        for k, x in enumerate(m):
            A(x)
            if len(m) >= 6:
                if k < len(nx): A(nx[k])
            else:
                per = (6 + len(m) - 1) // len(m); A("\n".join(nx[k * per:(k + 1) * per]))
        if q == 1:
            A("s_add_u32 s84, s84, 1\ns_cmp_ge_u32 s84, s77\ns_cbranch_scc1 %s" % nob)
            build(False)
            A(nob + ":")
            A("s_waitcnt lgkmcnt(0)")
    ok = A.label("xok")
    A("v_readfirstlane_b32 s26, v4\ns_cmp_ge_u32 s26, s85\ns_cbranch_scc1 %s" % ok)
    csync(A, 4, 85, add=False)
    A(ok + ":")
    A("s_mov_b32 m0, s81\ns_nop 4")
    for n in range(7, -1, -1):
        for r in range(4): A("ds_write_addtid_b32 v%d offset:%d" % (ACC + 4 * n + r, 1024 * n + 256 * r))
    A("""
    v_add_u32 v{VA}, s82, v{VA}
    v_add_u32 v{VB}, s82, v{VB}
    v_add_u32 v{VU}, s82, v{VU}
    s_sub_u32 s82, 0, s82
    s_add_u32 s83, s83, 4
    s_add_u32 s85, s85, 4
    s_lshl_b32 s27, s34, 12
    s_add_u32 s27, s27, {AT}
    s_waitcnt lgkmcnt(0)
    """.format(VA=VA, VB=VB, VU=VU, AT=WS_AT))
    csync(A, 0, 83)
    PR = ACC
    for nn in range(2):
        for src in range(4):
            for h in range(2):
                o = 32 * src + 4 * nn + 2 * h
                A("ds_read2st64_b32 %s, v%d offset0:%d offset1:%d" % (vr(PR + 16 * nn + 4 * src + 2 * h, 2), VX, o, o + 1))
    for nn in range(2):
        for r in range(4):
            u = UE + 2 * nn + (r >> 1)
            A(("v_and_b32 v%d, 0xffff0000, v%d" if r & 1 else "v_lshlrev_b32 v%d, 16, v%d") % (BF + 4 * nn + r, u))
    for nn in range(2):
        A("s_waitcnt lgkmcnt(%d)" % (8 if nn == 0 else 0))
        if nn == 1: A("s_mov_b64 exec, 1\nds_add_u32 v2, v3 offset:4\ns_mov_b64 exec, -1")
        p = PR + 16 * nn
        for r in range(4): A("v_fmac_f32 v%d, s78, v%d\nv_add_f32 v%d, v%d, v%d" % (p + r, BF + 4 * nn + r, p + 4 + r, p + 4 + r, p + 8 + r))
        for r in range(4): A("v_add_f32 v%d, v%d, v%d" % (p + r, p + r, p + 12 + r))
        for r in range(4): A("v_add_f32 v%d, v%d, v%d" % (p + r, p + r, p + 4 + r))
        A("v_cvt_pk_bf16_f32 v%d, v%d, v%d\nv_cvt_pk_bf16_f32 v%d, v%d, v%d" % (BF + 8 + 2 * nn, p, p + 1, BF + 9 + 2 * nn, p + 2, p + 3))
        A("buffer_store_dwordx2 %s, v%d, s[12:15], s27 offen offset:%d sc1" % (vr(BF + 8 + 2 * nn, 2), VS, 512 * nn))
    A("""
    s_mov_b32 s34, s35
    s_mov_b32 s35, s76
    s_mov_b32 s78, s79
    s_mov_b32 s79, s80
    s_cmp_lt_u32 s84, s77
    s_cbranch_scc1 %s
    """ % loop)
    stamp(A, 3, K)
    A("s_add_u32 s83, s83, 4\ns_waitcnt vmcnt(0)")
    if hand:
        csync(A, 0, 83)
        nf = A.label("nf"); pl = A.label("pl"); pd = A.label("pd")
        A("""
        s_lshl_b32 s27, s21, 8
        s_add_u32 s27, s27, 0x%x
        s_cmp_lg_u32 s33, 0
        s_cbranch_scc1 %s
        s_lshl_b32 s26, s20, 2
        v_mov_b32 v4, s26
        s_mov_b64 exec, 1
        buffer_store_dword v3, v4, s[12:15], s27 offen sc1
        s_mov_b64 exec, -1
        %s:
        v_and_b32 v4, 31, v0
        v_lshlrev_b32 v4, 2, v4
        s_mov_b32 s28, 0x200000
        %s:
        buffer_load_dword v1, v4, s[12:15], s27 offen sc1
        s_sub_u32 s28, s28, 1
        s_cmp_eq_u32 s28, 0
        s_cbranch_scc1 %s
        s_waitcnt vmcnt(0)
        v_cmp_ne_u32 vcc, 1, v1
        s_cbranch_vccnz %s
        %s:
        """ % (WS_CNT, nf, nf, pl, pd, pl, pd))
    stamp(A, 4, K)
    AT = 16
    for j in range(4): A("buffer_load_dwordx2 %s, v%d, s[12:15], s86 offen sc1\ns_add_u32 s86, s86, 4096" % (vr(AT + 2 * j, 2), VT))
    A("s_sub_u32 s86, s86, 16384\nbuffer_load_dwordx2 %s, v%d, s[12:15], s86 offen sc1" % (vr(AT + 8, 2), VT4))
    BB = 28; E = 48
    A("v_lshlrev_b32 v%d, 16, v%d\nv_and_b32 v%d, 0xffff0000, v%d\nv_lshlrev_b32 v%d, 16, v%d\nv_and_b32 v%d, 0xffff0000, v%d\nv_lshlrev_b32 v%d, 16, v%d" % (
        BB, B2, BB + 1, B2, BB + 2, B2 + 1, BB + 3, B2 + 1, BB + 4, B2 + 2))
    for j in range(5):
        for r in range(4): A("v_fma_f32 v%d, -v%d, v%d, v%d" % (E + 4 * j + r, GG + r, BB + j, BB + j))
    for j in range(5):
        A("s_waitcnt vmcnt(%d)" % (4 - j))
        for r in range(4):
            A(("v_and_b32 v%d, 0xffff0000, v%d" if r & 1 else "v_lshlrev_b32 v%d, 16, v%d") % (BF + r, AT + 2 * j + (r >> 1)))
        for r in range(4): A("v_fmac_f32 v%d, v%d, v%d" % (E + 4 * j + r, GG + r, BF + r))
        A("ds_write_b128 v%d, %s offset:%d" % (VE, vr(E + 4 * j, 4), 1024 * j))
    A("s_waitcnt lgkmcnt(0)")
    stamp(A, 5, K)
    A("s_barrier\ns_endpgm")

def k2(A, name="k2_kernel", K=1):
    A.begin(name, 256, 512, LDS2, vgpr=256)
    end = A.label("end"); cv = A.label("conv")
    prologue(A, end); k2_map(A)
    A("s_cmp_ge_u32 s3, 4\ns_cbranch_scc1 %s" % cv)
    k2_gemm(A, K)
    A(cv + ":")
    k2_conv(A, K)
    A(end + ":\ns_endpgm")
```

```python
import sys; sys.path.insert(0, "tools")
from gen2 import *
import gen2
TS[0] = "ts" in sys.argv
OPT.update(sys.argv[2:])
NBW[:] = [6, 0]
for a in sys.argv:
    if a.startswith('cut='): CUT0[0] = float(a[4:])
    if a.startswith('nsl='): NBW[:] = [int(a[4]), int(a[5])]
A = Asm(); k1(A); k2(A); open(sys.argv[1], "w").write(A.text())
```
